```python
import torch

def _softmax(x, axis=-1):
    return torch.softmax(x, dim=axis)
def _gelu(x):
    return torch.nn.functional.gelu(x, approximate="tanh")
def _silu(x):
    return torch.nn.functional.silu(x)
def _sigmoid(x):
    return torch.sigmoid(x)
def _layernorm(x, axis=-1, eps=1e-5):
    m = x.mean(dim=axis, keepdim=True)
    v = x.var(dim=axis, keepdim=True, unbiased=False)
    return (x - m) / torch.sqrt(v + eps)
def _scatter_add(tgt, idx, src, axis=0):
    return tgt.clone().index_add_(axis, idx, src)
def _segment_sum(src, seg, n):
    out = torch.zeros((n,) + src.shape[1:], dtype=src.dtype)
    return out.index_add_(0, seg, src)
def _pad(x, pw):
    flat = tuple(v for pair in reversed(pw) for v in pair)
    return torch.nn.functional.pad(x, flat)

kernel_name = 'gated_mix__linear_attn_block__ssm_conv_h3__prompt'

def setup_inputs():

    _w = (lambda a: (lambda t: t.to(torch.bfloat16) if t.is_floating_point() else t)(torch.as_tensor(a)))
    def _A_setup():
        B, S, D = 1, 2048, 640
        return {
            "x": _w((lambda *s: torch.randn(*s, dtype=torch.bfloat16) * 0.05)(B, S, D)),
            "wqkv": _w((lambda *s: torch.randn(*s, dtype=torch.bfloat16) * 1.6)(D, 3 * D)),
            "wo": _w((lambda *s: torch.randn(*s, dtype=torch.bfloat16) * 0.1)(D, D)),
        }
    _A_in = _A_setup()

    def _B_setup():
        B, S, D = 1, 2048, 640
        ks = 4
        return {
            "q": _w((lambda *s: torch.randn(*s, dtype=torch.bfloat16) * 0.05)(B, S, D)),
            "k": _w((lambda *s: torch.randn(*s, dtype=torch.bfloat16) * 0.8)(B, S, D)),
            "v": _w((lambda *s: torch.randn(*s, dtype=torch.bfloat16) * 0.8)(B, S, D)),
            "shift_k": _w((lambda *s: torch.randn(*s, dtype=torch.bfloat16) * 0.8)(D, ks) * 0.5),
            "ssm_k": _w((lambda *s: torch.randn(*s, dtype=torch.bfloat16) * 0.8)(D, S) * (1.0 / S ** 0.5)),
            "ssm_D": _w((lambda *s: torch.randn(*s, dtype=torch.bfloat16) * 0.8)(D)),
        }
    _B_in = _B_setup()

    return {
        "A_x": _A_in["x"],
        "A_wqkv": _A_in["wqkv"],
        "A_wo": _A_in["wo"],
        "B_q": _B_in["q"],
        "B_k": _B_in["k"],
        "B_v": _B_in["v"],
        "B_shift_k": _B_in["shift_k"],
        "B_ssm_k": _B_in["ssm_k"],
        "B_ssm_D": _B_in["ssm_D"],
        "gate_w": _w((lambda *s: torch.randn(*s, dtype=torch.bfloat16) * 0.05)(640) * 16.0),
    }

def reference(A_x, A_wqkv, A_wo, B_q, B_k, B_v, B_shift_k, B_ssm_k, B_ssm_D, gate_w):
    def _A_ref(x, wqkv, wo):
        B, S, D = x.shape
        H = 32; Dh = D // H
        qkv = (lambda x, *d: x.permute(*d))((x @ wqkv).reshape(B, S, 3, H, Dh), 2, 0, 3, 1, 4)
        q, k, v = qkv[0], qkv[1], qkv[2]
        phi = lambda t: torch.where(t > 0, t + 1, torch.exp(t)) + 1e-6
        pq, pk = phi(q), phi(k)
        kv = torch.einsum("bhsd,bhse->bhde", pk, v)
        z = torch.einsum("bhsd->bhd", pk)
        num = torch.einsum("bhqd,bhde->bhqe", pq, kv)
        den = torch.einsum("bhqd,bhd->bhq", pq, z)[..., None] + 1e-6
        o = num / den
        return (lambda x, *d: x.permute(*d))(o, 0, 2, 1, 3).reshape(B, S, D) @ wo

    def _B_ref(q, k, v, shift_k, ssm_k, ssm_D):
        B, S, D = q.shape
        ks = shift_k.shape[-1]
        k_pad = _pad(k, ((0, 0), (ks - 1, 0), (0, 0)))
        k_shift = torch.zeros_like(k)
        for t in range(ks):
            k_shift = k_shift + k_pad[:, t:t + S, :] * shift_k[:, ks - 1 - t][None, None, :]
        kv = k_shift * v
        L = 2 * S
        kv_pad = _pad(kv, ((0, 0), (0, S), (0, 0)))
        kf_pad = _pad(ssm_k, ((0, 0), (0, S)))
        kv_f = (lambda x, axes=(-2,-1): torch.fft.rfft2(x.float(), dim=axes))(kv_pad[:, None, :, :], axes=(1, 2))
        kf_f = (lambda x, axes=(-2,-1): torch.fft.rfft2(x.float(), dim=axes))(kf_pad[:, None, :], axes=(1, 2))
        kf_f = (lambda x, *d: x.permute(*d))(kf_f, 1, 2, 0)
        y_f = kv_f * kf_f[None, :, :, :]
        y = (lambda x, s, axes=(-2,-1): torch.fft.irfft2(x, s=s, dim=axes).to(torch.bfloat16))(y_f, (1, L), axes=(1, 2))[:, 0, :S, :]
        y = y + kv * ssm_D[None, None, :]
        return q * y

    x = A_x
    g = _sigmoid((x * gate_w).sum(-1, keepdims=True))
    a = _A_ref(x, A_wqkv, A_wo)
    b = _B_ref(x, B_k, B_v, B_shift_k, B_ssm_k, B_ssm_D)
    return g * a + (1 - g) * b
```

```python
import re
HDR = '.amdgcn_target "amdgcn-amd-amdhsa--gfx950"\n'

def kern(name, body, vgpr=256, sgpr=102, accum=None):
    if accum is None:
        accum = min(256, (vgpr + 3) // 4 * 4)
    return f""".text
.globl {name}
.p2align 8
.type {name},@function
{name}:
{body}
    s_endpgm
.section .rodata,"a"
.p2align 6
.amdhsa_kernel {name}
  .amdhsa_next_free_vgpr {vgpr}
  .amdhsa_next_free_sgpr {sgpr}
  .amdhsa_accum_offset {accum}
  .amdhsa_group_segment_fixed_size 0
  .amdhsa_kernarg_size 104
  .amdhsa_user_sgpr_count 2
  .amdhsa_user_sgpr_kernarg_segment_ptr 1
  .amdhsa_system_sgpr_workgroup_id_x 1
.end_amdhsa_kernel
"""

_REG = re.compile(r"^-?(?:abs\()?\|?([vas])(?:(\d+)|\[(\d+):(\d+)\])\|?\)?$")
def regs(op):
    op = op.strip()
    if op in ("vcc", "exec", "m0"):
        return {(op, 0)}
    if op in ("vcc_lo", "vcc_hi"): return {("vcc", 0)}
    if op in ("exec_lo", "exec_hi"): return {("exec", 0)}
    m = _REG.match(op)
    if not m:
        return set()
    k = m.group(1)
    if m.group(2) is not None:
        return {(k, int(m.group(2)))}
    return {(k, i) for i in range(int(m.group(3)), int(m.group(4)) + 1)}

TRANS = ("v_exp_f32", "v_log_f32", "v_rcp_f32", "v_rsq_f32", "v_sqrt_f32", "v_sin_f32", "v_cos_f32", "v_rcp_iflag_f32")

class I:
    def __init__(self, text):
        self.text = text
        t = text.split(";")[0].strip()
        self.label = t.endswith(":")
        parts = t.split(None, 1)
        self.mn = parts[0] if parts else ""
        rest = parts[1] if len(parts) > 1 else ""
        ops = [o.strip() for o in rest.split(",")] if rest else []
        self.mods = ""
        if ops:
            lp = ops[-1].split(None, 1)
            ops[-1] = lp[0]
            self.mods = lp[1] if len(lp) > 1 else ""
        self.ops = ops
        mn = self.mn
        self.kind = "other"
        self.w = set(); self.r = set(); self.ab = set(); self.c = set(); self.data = set()
        R = [regs(o) for o in ops]
        allr = lambda xs: set().union(*xs) if xs else set()
        if self.label or not mn or mn.startswith("."):
            self.kind = "label"
        elif mn.startswith("v_mfma"):
            self.kind = "mfma"; self.w = R[0]; self.ab = R[1] | R[2]; self.c = R[3]; self.r = self.ab | self.c
            self.passes = 4 if "16x16x32" in mn else 8
        elif mn.startswith("v_"):
            self.kind = "valu"
            if mn.startswith(("v_add_co", "v_sub_co", "v_addc_co", "v_subb_co", "v_subrev_co")):
                self.w = R[0] | R[1]; self.r = allr(R[2:])
            elif mn.startswith("v_permlane") and "swap" in mn:
                self.w = R[0] | R[1]; self.r = R[0] | R[1]
            elif mn == "v_nop":
                pass
            else:
                self.w = R[0]; self.r = allr(R[1:])
                if mn.startswith(("v_fmac", "v_dot2c", "v_pk_fmac")) or "dpp" in mn or "row_" in self.mods or "quad_perm" in self.mods:
                    self.r |= R[0]
            self.dpp = "dpp" in mn or "row_" in self.mods or "quad_perm" in self.mods
            self.trans = mn.startswith(TRANS)
            self.dot = mn.startswith("v_dot")
        elif mn.startswith("ds_"):
            self.kind = "ds"
            if mn.startswith(("ds_read", "ds_bpermute", "ds_permute", "ds_swizzle")):
                self.w = R[0]; self.r = allr(R[1:])
            else:
                self.r = allr(R)
        elif mn.startswith(("buffer_", "global_")):
            self.kind = "vmem"
            self.lds = " lds" in (" " + self.mods) or "load_lds" in mn
            if mn.startswith(("buffer_wbl2", "buffer_inv")):
                pass
            elif "load" in mn and not self.lds:
                self.w = R[0]; self.r = allr(R[1:])
            else:
                self.r = allr(R)
                if "store" in mn and ("x4" in mn or "x3" in mn):
                    self.data = R[0] if mn.startswith("buffer_") else R[1]
                if "atomic" in mn and "sc0" in self.mods:
                    self.w = R[0]
            if self.lds:
                self.r |= {("m0", 0)}
        elif mn.startswith("s_"):
            self.kind = "salu"
            if mn.startswith(("s_cmp", "s_cbranch", "s_branch", "s_waitcnt", "s_barrier", "s_nop", "s_sleep", "s_setprio", "s_endpgm", "s_bitcmp")):
                self.r = allr(R)
            else:
                self.w = R[0] if R else set(); self.r = allr(R[1:])
                if "saveexec" in mn: self.w |= {("exec", 0)}
    def states(self):
        if self.kind == "label": return 0
        if self.mn == "s_nop": return int(self.ops[0], 0) + 1
        return 1

def need(p, c):
    n = 0
    vw = {x for x in p.w if x[0] in "va"}
    sw = {x for x in p.w if x[0] in ("s", "vcc")}
    if p.kind == "valu":
        if c.kind == "mfma" and vw & c.r: n = max(n, 2)
        if c.kind == "vmem" and sw & c.r: n = max(n, 5)
        if c.kind == "valu":
            if sw & c.r: n = max(n, 4 if c.mn.startswith(("v_readlane", "v_writelane")) else 2)
            if c.mn.startswith(("v_readfirstlane", "v_readlane")) and vw & c.r: n = max(n, 1)
            if p.trans and not c.trans and vw & c.r: n = max(n, 1)
            if c.dpp and vw & c.r: n = max(n, 2)
            if c.mn.startswith("v_permlane") and vw & c.r: n = max(n, 2)
            if ("sdwa" in p.mn or "op_sel" in p.mods) and vw & (c.r | c.w): n = max(n, 1)
        if p.dot and vw & (c.r | c.w):
            if c.mn == p.mn and not (vw & (regs(c.ops[1]) | regs(c.ops[2]))): pass
            else: n = max(n, 3)
        if p.trans and c.kind in ("vmem", "ds") and vw & c.r: n = max(n, 1)
        if c.kind == "salu" and sw & c.r: n = max(n, 1)
    if p.kind == "mfma":
        big = {4: 8, 8: 12}[p.passes]; mid = {4: 6, 8: 10}[p.passes]; war = {4: 3, 8: 7}[p.passes]
        if c.kind == "mfma":
            if p.w & c.ab: n = max(n, big)
            if p.w & c.c and p.w != c.c: n = max(n, mid)
            if p.w & c.w and not (p.w & c.c): n = max(n, mid)
        elif c.kind in ("valu", "vmem", "ds"):
            if p.w & (c.r | c.w): n = max(n, big)
            if c.kind == "valu" and p.c & c.w: n = max(n, war)
    if p.kind == "salu" and ("m0", 0) in p.w and c.kind == "vmem" and c.lds: n = max(n, 1)
    if p.kind == "vmem" and p.data and p.data & c.w:
        n = max(n, 2 if c.kind == "valu" else 1)
    return n

def hazard_pass(lines):
    out = []
    for t in lines:
        c = I(t)
        if c.kind != "label":
            dist = 0; req = 0
            for p in reversed(out):
                if dist >= 20: break
                if p.kind != "label":
                    k = need(p, c) - dist
                    req = max(req, k)
                dist += p.states()
            while req > 0:
                k = min(req, 16)
                out.append(I(f"    s_nop {k-1}"))
                req -= k
        out.append(c)
    return [x.text for x in out]

class A:
    def __init__(self):
        self.l = []
    def __call__(self, s):
        for x in s.strip("\n").split("\n"):
            if x.strip():
                self.l.append("    " + x.strip())
    def label(self, s):
        self.l.append(s + ":")
    def text(self, haz=True):
        return "\n".join(hazard_pass(self.l) if haz else self.l)

KA = dict(x=0, wqkv=8, wo=16, q=24, k=32, v=40, shift=48, ssmk=56, ssmd=64, gate=72, out=80, dbg=88, ws=96)
SZ = dict(x=2621440, wqkv=2457600, wo=819200, q=2621440, k=2621440, v=2621440, shift=5120, ssmk=2621440, ssmd=1280, gate=1280, out=2621440, dbg=256, ws=268435456)

def srd(a, d, b, size):
    a(f"s_mov_b32 s{d}, s{b}")
    a(f"s_and_b32 s{d+1}, s{b+1}, 0xffff")
    a(f"s_mov_b32 s{d+2}, {size}")
    a(f"s_mov_b32 s{d+3}, 0x00020000")

def vr(b, n=4):
    return f"v[{b}:{b+n-1}]" if n > 1 else f"v{b}"
def sr(b, n=4):
    return f"s[{b}:{b+n-1}]" if n > 1 else f"s{b}"
```

```python
import sys
from asmlib import *

UT  = 0x000000
PQF = 0x300000
YT  = 0x600000
KVP = 0x900000
KVF = 0xA00000
GG  = 0xA20000
OOB = 0x7FFFFF00
LOG2E = 0x3FB8AA3B
EPS = 0x358637BD

P = dict(x=16, wqkv=18, wo=20, q=22, k=24, v=26, shift=28, ssmk=30, ssmd=32, gate=34, out=36, dbg=38, ws=40)
def load_ptrs(a):
    a("s_load_dwordx16 s[16:31], s[0:1], 0")
    a("s_load_dwordx8 s[32:39], s[0:1], 64")
    a("s_load_dwordx2 s[40:41], s[0:1], 96")

class Lg:
    def __init__(self, a, name, cap):
        self.a = a; self.name = name; self.n = 0; self.done = 0; self.cap = cap
    def issue(self, text):
        self.a(text); self.n += 1
        return self.n
    def wait(self, t):
        if t > self.done:
            k = self.n - t
            if k > self.cap: k = self.cap
            self.a(f"s_waitcnt {self.name}({k})")
            self.done = self.n - k
    def all(self):
        self.wait(self.n)

def phi(a, regs_, tmp, sL, sE):
    n = len(tmp)
    for i0 in range(0, len(regs_), n):
        grp = regs_[i0:i0+n]
        for r, t in zip(grp, tmp): a(f"v_mul_f32 v{t}, s{sL}, v{r}")
        for r, t in zip(grp, tmp): a(f"v_exp_f32_e64 v{t}, v{t} clamp")
        for r, t in zip(grp, tmp): a(f"v_max_f32 v{r}, s{sE}, v{r}")
        for r, t in zip(grp, tmp): a(f"v_add_f32 v{r}, v{r}, v{t}")

SLOT = 36864
def kernel_a():
    a = A()
    a("s_cmp_ge_u32 s2, 256")
    a("s_cbranch_scc1 LA_end")
    load_ptrs(a)
    a("v_and_b32 v1, 63, v0")
    a("v_lshrrev_b32 v2, 6, v0")
    a("v_readfirstlane_b32 s3, v2")
    a("s_and_b32 s4, s2, 7")
    a("s_lshr_b32 s5, s2, 3")
    a("s_cmp_ge_u32 s5, 24")
    a("s_cbranch_scc1 LA_aux")
    a("s_lshr_b32 s6, s4, 1")
    a("s_lshl_b32 s6, s6, 2")
    a("s_and_b32 s7, s5, 3")
    a("s_add_u32 s6, s6, s7")
    a("s_lshr_b32 s8, s5, 2")
    a("s_and_b32 s9, s4, 1")
    a("s_lshl_b32 s10, s7, 2")
    a("s_lshr_b32 s10, 0x7520, s10")
    a("s_and_b32 s10, s10, 15")
    a("s_lshl_b32 s11, s8, 2")
    a("s_lshr_b32 s11, 0x865320, s11")
    a("s_and_b32 s11, s11, 15")
    a("s_add_u32 s10, s10, s11")
    a("s_sub_u32 s11, s10, 10")
    a("s_cmp_ge_u32 s10, 10")
    a("s_cselect_b32 s10, s11, s10")
    a("s_lshl_b32 s52, s10, 7")
    a("s_mul_i32 s53, s10, 245760")
    a("s_lshl_b32 s11, s9, 2")
    a("s_add_u32 s11, s11, s8")
    a("s_mul_i32 s12, s11, 160")
    a("s_add_u32 s12, s12, 1280")
    a("s_lshl_b32 s13, s9, 1")
    a("s_add_u32 s13, s13, s8")
    a("s_sub_u32 s13, s13, 4")
    a("s_mul_i32 s14, s13, 320")
    a("s_cmp_ge_u32 s8, 4")
    a("s_cselect_b32 s12, s14, s12")
    a("s_cselect_b32 s14, 0, -80")
    a("s_cselect_b32 s15, 0, 1200")
    a("v_lshrrev_b32 v2, 3, v1")
    a("v_and_b32 v3, 7, v1")
    a("v_lshrrev_b32 v6, 1, v2")
    a("v_xor_b32 v3, v3, v6")
    a("s_lshl_b32 s54, s6, 7")
    a("s_lshl_b32 s55, s3, 4")
    a("s_add_u32 s54, s54, s55")
    a("v_add_u32 v2, s54, v2")
    a("v_mul_u32_u24 v2, 1280, v2")
    a("v_lshl_add_u32 v4, v3, 4, v2")
    a("v_xor_b32 v5, 64, v4")
    a(f"v_add_u32 v5, {10240-1024}, v5")
    a("s_and_b32 s55, s3, 1")
    a("s_lshl_b32 s55, s55, 1")
    a("s_mul_i32 s56, s3, 30720")
    a("s_add_u32 s56, s56, s12")
    for i in range(3):
        d = 6 + i
        a(f"v_add_u32 v9, {64*i}, v1")
        a("v_mul_u32_u24 v10, 3277, v9")
        a("v_lshrrev_b32 v10, 16, v10")
        a("v_mul_u32_u24 v11, 20, v10")
        a("v_sub_u32 v9, v9, v11")
        a("v_xor_b32 v9, s55, v9")
        a("v_mul_u32_u24 v10, 3840, v10")
        a(f"v_lshl_add_u32 v{d}, v9, 4, v10")
        a("v_cmp_le_u32 vcc, 10, v9")
        a("v_mov_b32 v11, s14")
        a("v_cndmask_b32 v11, 0, v11, vcc")
        a(f"v_add_u32 v{d}, v{d}, v11")
        a("v_subrev_u32 v10, 10, v9")
        a("v_cndmask_b32 v9, v9, v10, vcc")
        a("v_cmp_le_u32 vcc, 5, v9")
        a("v_mov_b32 v11, s15")
        a("v_cndmask_b32 v11, 0, v11, vcc")
        a(f"v_add3_u32 v{d}, v{d}, v11, s56")
        if i: a(f"v_subrev_u32 v{d}, {1024*i}, v{d}")
    a("s_lshl_b32 s57, s3, 11")
    a("s_mul_i32 s58, s3, 2560")
    a("s_add_u32 s58, s58, 16384")
    a("s_waitcnt lgkmcnt(0)")
    srd(a, 44, P['x'], SZ['x'])
    srd(a, 48, P['wqkv'], SZ['wqkv'])
    def dma(slot):
        a(f"s_add_u32 m0, s57, {slot*SLOT}")
        a("buffer_load_dwordx4 v4, s[44:47], s52 offen lds")
        a("buffer_load_dwordx4 v5, s[44:47], s52 offen offset:1024 lds")
        a(f"s_add_u32 m0, s58, {slot*SLOT}")
        a("buffer_load_dwordx4 v6, s[48:51], s53 offen lds")
        a("buffer_load_dwordx4 v7, s[48:51], s53 offen offset:1024 lds")
        a("s_mov_b32 exec_hi, 0")
        a("buffer_load_dwordx4 v8, s[48:51], s53 offen offset:2048 lds")
        a("s_mov_b32 exec_hi, -1")
        a("s_add_u32 s52, s52, 128")
        a("s_add_u32 s53, s53, 245760")
        a("s_cmp_eq_u32 s52, 1280")
        a("s_cselect_b32 s52, 0, s52")
        a("s_cselect_b32 s53, 0, s53")
    for s in range(3): dma(s)
    srd(a, 60, P['ws'], SZ['ws'])
    a("s_and_b32 s64, s3, 3")
    a("s_lshr_b32 s65, s3, 2")
    a("v_and_b32 v9, 15, v1")
    a("v_lshrrev_b32 v10, 4, v1")
    a("v_lshrrev_b32 v11, 1, v9")
    a("v_xor_b32 v11, v11, v10")
    a("v_lshlrev_b32 v11, 4, v11")
    a("v_lshl_add_u32 v11, v9, 7, v11")
    a("s_lshl_b32 s66, s64, 12")
    a("v_add_u32 v12, s66, v11")
    a("v_xor_b32 v13, 64, v12")
    a("v_bfe_u32 v11, v1, 2, 2")
    a("v_lshl_add_u32 v11, v10, 3, v11")
    a("v_mul_u32_u24 v11, 320, v11")
    a("v_and_b32 v14, 3, v1")
    a("v_lshl_add_u32 v11, v14, 3, v11")
    a("s_mul_i32 s66, s65, 160")
    a("s_add_u32 s66, s66, 16384")
    a("v_add_u32 v11, s66, v11")
    a("v_and_b32 v14, 1, v10")
    a("v_lshlrev_b32 v14, 5, v14")
    a("v_add_u32 v15, v11, v14")
    a("v_sub_u32 v16, v11, v14")
    a("s_cmp_eq_u32 s65, 0")
    a("s_cselect_b64 vcc, -1, 0")
    a("v_cndmask_b32 v14, v16, v15, vcc")
    a("v_cndmask_b32 v15, v15, v16, vcc")
    for r in range(12, 16):
        a(f"v_add_u32 v{r+4}, {2*SLOT}, v{r}")
    a(f"s_mov_b32 s67, {LOG2E}")
    a(f"s_mov_b32 s68, {EPS}")
    ACC = 24; AF = 64; BF = 80
    acc = lambda mt, T: ACC + (mt * 5 + T) * 4
    for r in range(ACC, ACC + 40): a(f"v_mov_b32 v{r}, 0")
    a("s_cmp_ge_u32 s8, 4")
    a("s_cbranch_scc1 LA_q")

    def mainloop(q):
        for i in range(10):
            slot = i & 3
            a(f"s_waitcnt vmcnt({5 * min(2, 9 - i)})")
            a("s_barrier")
            lg = Lg(a, "lgkmcnt", 15)
            hi = 4 if slot >= 2 else 0
            so = (slot & 1) * SLOT
            reads = []
            for ks in range(2):
                for mt in range(2):
                    reads.append(f"ds_read_b128 {vr(AF + ks*8 + mt*4)}, v{12+ks+hi} offset:{so + mt*2048}")
                for T in range(5):
                    for hh in range(2):
                        reads.append(f"ds_read_b64_tr_b16 {vr(BF + ks*20 + T*4 + hh*2, 2)}, v{14+(T&1)+hi} offset:{so + 32*T + ks*10240 + hh*1280}")
            pos = 0
            def issue(k):
                nonlocal pos
                for _ in range(k):
                    if pos < len(reads):
                        lg.issue(reads[pos]); pos += 1
            issue(12)
            if i + 3 < 10: dma((i + 3) & 3)
            for ks in range(2):
                for T in range(5):
                    lg.wait(ks * 12 + 2 + 2 * (T + 1))
                    for mt in range(2):
                        x = vr(AF + ks*8 + mt*4); w = vr(BF + ks*20 + T*4); c = vr(acc(mt, T))
                        if q: a(f"v_mfma_f32_16x16x32_bf16 {c}, {w}, {x}, {c}")
                        else: a(f"v_mfma_f32_16x16x32_bf16 {c}, {x}, {w}, {c}")
                    issue(3 if T < 2 else 2)
    XB = 2 * SLOT
    a("s_lshl_b32 s69, s64, 2")
    for k, (tab, dst) in enumerate(((0x2110, 70), (0x5455, 71), (0x2210, 72), (0x3433, 73))):
        a(f"s_lshr_b32 s{dst}, {tab}, s69")
        a(f"s_and_b32 s{dst}, s{dst}, 15")
    a("s_mul_i32 s74, s65, 24576")
    a(f"s_add_u32 s74, s74, {XB}")
    a("v_lshlrev_b32 v22, 4, v1")
    for k in range(4):
        a(f"s_lshl_b32 s75, s{70+k}, 10")
        a("s_add_u32 s75, s75, s74")
        a(f"v_add_u32 v{120+k}, s75, v22")
    a("s_mul_i32 s75, s64, 6144")
    a("s_add_u32 s75, s75, s74")
    a("v_add_u32 v124, s75, v22")
    a("s_mul_i32 s75, s6, 53760")
    a("s_lshl_b32 s76, s11, 1")
    a("s_add_u32 s76, s76, s65")
    a("s_mul_i32 s76, s76, 3360")
    a("s_add_u32 s75, s75, s76")
    a(f"s_add_u32 s75, s75, {KVP}")
    for k in range(2):
        ta, f = 70 + 2*k, 71 + 2*k
        d = 20 + k
        a(f"s_lshl_b32 s76, s{ta}, 4")
        a("v_lshl_add_u32 v126, v10, 2, s76")
        a("v_cmp_le_u32 vcc, 20, v126")
        a("v_cndmask_b32 v127, 0, 1, vcc")
        a(f"s_cmp_eq_u32 s{f}, 5")
        a(f"s_cselect_b32 s76, 2, s{f}")
        a("s_lshl_b32 s76, s76, 4")
        a("s_sub_u32 s76, s76, 40")
        a("v_add_u32 v128, s76, v9")
        a("v_mul_u32_u24 v129, 20, v127")
        a("v_sub_u32 v130, v128, v129")
        a("v_cmp_gt_u32 s[78:79], 20, v130")
        a("v_cmp_eq_u32 vcc, -8, v128")
        a("v_cndmask_b32 v130, v130, 20, vcc")
        a("s_or_b64 s[78:79], s[78:79], vcc")
        a("v_cmp_gt_u32 vcc, 40, v126")
        a("s_and_b64 vcc, vcc, s[78:79]")
        a("v_sub_u32 v126, v126, v129")
        a("v_mul_u32_u24 v130, 80, v130")
        a("v_lshl_add_u32 v130, v126, 2, v130")
        a("v_mul_u32_u24 v127, 1680, v127")
        a("v_add_u32 v130, v130, v127")
        a(f"v_mov_b32 v{d}, {OOB}")
        a(f"v_cndmask_b32 v{d}, v{d}, v130, vcc")
    mainloop(False)
    F = 64
    def pack(T, dst):
        for mt in range(2):
            for h in range(2):
                a(f"v_cvt_pk_bf16_f32 v{dst + mt*2 + h}, v{acc(mt,T) + 2*h}, v{acc(mt,T) + 2*h + 1}")
    for T in (3, 4):
        pack(T, F + 4*T)
        a(f"ds_write_b128 v124, {vr(F + 4*T)} offset:{T*1024}")
    pack(2, F + 20)
    a("v_cmp_gt_u32 vcc, 8, v9")
    a("v_mov_b32 v22, 0x3f803f80")
    for r in range(4): a(f"v_cndmask_b32 v{F+20+r}, v{F+20+r}, v22, vcc")
    a(f"ds_write_b128 v124, {vr(F + 20)} offset:{5*1024}")
    tmp = list(range(88, 96))
    for T in (0, 1, 2):
        rs = [acc(mt, T) + i for mt in range(2) for i in range(4)]
        phi(a, rs, tmp, 67, 68)
        pack(T, F + 4*T)
        a(f"ds_write_b128 v124, {vr(F + 4*T)} offset:{T*1024}")
    a("s_waitcnt lgkmcnt(0)")
    a("s_barrier")
    lg = Lg(a, "lgkmcnt", 15)
    RB = 132
    tk = {}
    for rg in range(4):
        for k in range(4):
            if rg == 3 and k == 3: lg.wait(1)
            tk[rg, k] = lg.issue(f"ds_read_b128 {vr(RB + (rg*4+k)*4)}, v{120+k} offset:{rg*6144}")
    for rg in range(4):
        for p in range(2):
            lg.wait(tk[rg, 2*p+1])
            c = vr(24 + 4*p)
            a(f"v_mfma_f32_16x16x32_bf16 {c}, {vr(RB+(rg*4+2*p)*4)}, {vr(RB+(rg*4+2*p+1)*4)}, {c if rg else 0}")
    for p in range(2):
        a(f"buffer_store_dwordx4 {vr(24+4*p)}, v{20+p}, s[60:63], s75 offen")
    a("s_endpgm")
    a.label("LA_q")
    a("s_lshl_b32 s69, s6, 3")
    a("s_lshl_b32 s70, s64, 1")
    a("s_add_u32 s69, s69, s70")
    a("s_mul_i32 s69, s69, 40")
    a("s_mul_i32 s70, s13, 10")
    a("s_add_u32 s69, s69, s70")
    a("s_mul_i32 s70, s65, 5")
    a("s_add_u32 s69, s69, s70")
    a("s_lshl_b32 s69, s69, 9")
    a(f"s_add_u32 s69, s69, {PQF}")
    a("s_add_u32 s70, s69, 20480")
    a("v_lshlrev_b32 v20, 3, v1")
    mainloop(True)
    tmp = list(range(88, 96))
    for T in range(5):
        rs = [acc(mt, T) + i for mt in range(2) for i in range(4)]
        phi(a, rs, tmp, 67, 68)
        pack(T, F + 4*T)
        for mt in range(2):
            a(f"buffer_store_dwordx2 {vr(F + 4*T + 2*mt, 2)}, v20, s[60:63], s{69+mt} offen offset:{T*512}")
    a("s_endpgm")
    a.label("LA_aux")
    a("s_lshl_b32 s6, s4, 3")
    a("s_add_u32 s6, s6, s5")
    a("s_sub_u32 s6, s6, 24")
    a("s_cmp_ge_u32 s3, 5")
    a("s_cbranch_scc1 LA_gate")
    a("s_lshr_b32 s7, s6, 1")
    a("s_and_b32 s8, s6, 1")
    a("v_lshrrev_b32 v2, 5, v1")
    a("v_and_b32 v3, 31, v1")
    a("s_lshl_b32 s9, s3, 5")
    a("s_mul_i32 s10, s8, 160")
    a("s_add_u32 s9, s9, s10")
    a("v_add_u32 v3, s9, v3")
    a("s_lshl_b32 s10, s7, 1")
    a("v_add_u32 v2, s10, v2")
    a("v_mul_u32_u24 v4, 40960, v2")
    a("v_lshl_add_u32 v4, v3, 2, v4")
    a("v_subrev_u32 v5, 3840, v4")
    a("v_lshlrev_b32 v6, 4, v3")
    a("v_lshlrev_b32 v7, 13, v3")
    a("v_lshl_add_u32 v7, v2, 6, v7")
    a("v_add_u32 v8, 4096, v7")
    a("s_waitcnt lgkmcnt(0)")
    srd(a, 44, P['k'], SZ['k'])
    srd(a, 48, P['v'], SZ['v'])
    srd(a, 52, P['shift'], SZ['shift'])
    srd(a, 60, P['ws'], SZ['ws'])
    KR = 16; VR = 52; W = 12
    vm = Lg(a, "vmcnt", 63)
    tw = vm.issue(f"buffer_load_dwordx4 {vr(W)}, v6, s[52:55], 0 offen")
    tkk = []; tvv = []
    for r in range(3):
        tkk.append(vm.issue(f"buffer_load_dword v{KR+r}, v5, s[44:47], 0 offen offset:{1280*r} nt"))
    for r4 in range(8):
        a(f"s_mov_b32 s{64+r4}, {5120*r4}")
    for r4 in range(8):
        if r4 == 7: vm.wait(tkk[8])
        for r in range(4):
            tkk.append(vm.issue(f"buffer_load_dword v{KR+3+4*r4+r}, v4, s[44:47], s{64+r4} offen offset:{1280*r} nt"))
        for r in range(4):
            tvv.append(vm.issue(f"buffer_load_dword v{VR+4*r4+r}, v4, s[48:51], s{64+r4} offen offset:{1280*r} nt"))
    WP = 84
    vm.wait(tw)
    a("s_mov_b32 s56, 0xffff0000")
    for j in range(4):
        for c in range(2):
            src = W + 2*c + (j >> 1)
            if j & 1: a(f"v_and_b32 v{WP+2*j+c}, s56, v{src}")
            else: a(f"v_lshlrev_b32 v{WP+2*j+c}, 16, v{src}")
    KF = 92
    U = 162
    def unpack(dst, src):
        a(f"v_lshlrev_b32 v{dst}, 16, v{src}")
        a(f"v_and_b32 v{dst+1}, s56, v{src}")
    vm.wait(tkk[2])
    for r in range(3): unpack(KF + 2*r, KR + r)
    for r in range(32):
        vm.wait(tkk[3 + r]);
        unpack(KF + 2*(3+r), KR + 3 + r)
        u = vr(U + 2*r, 2)
        a(f"v_pk_mul_f32 {u}, {vr(KF+2*r,2)}, {vr(WP+6,2)}")
        for j in (2, 1, 0):
            a(f"v_pk_fma_f32 {u}, {vr(KF+2*(r+3-j),2)}, {vr(WP+2*j,2)}, {u}")
        vm.wait(tvv[r])
        unpack(226, VR + r)
        a(f"v_pk_mul_f32 {u}, {u}, v[226:227]")
    O = 228
    k = 0
    for c in range(2):
        for rho in range(4):
            o = O + 4 * (k & 3); k += 1
            for q in range(4):
                a(f"v_cvt_pk_bf16_f32 v{o+q}, v{U + 2*(28-8*q+rho) + c}, v{U + 2*(24-8*q+rho) + c}")
            a(f"buffer_store_dwordx4 {vr(o)}, v{7+c}, s[60:63], 0 offen offset:{16*rho}")
    a("s_endpgm")
    a.label("LA_gate")
    a("s_cmp_ge_u32 s3, 7")
    a("s_cbranch_scc1 LA_end")
    a("s_lshl_b32 s7, s6, 5")
    a("s_sub_u32 s8, s3, 5")
    a("s_lshl_b32 s8, s8, 4")
    a("s_add_u32 s7, s7, s8")
    a("v_and_b32 v2, 15, v1")
    a("v_lshrrev_b32 v3, 4, v1")
    a("v_add_u32 v3, s7, v3")
    a("v_mul_u32_u24 v4, 1280, v3")
    a("v_lshlrev_b32 v5, 4, v2")
    a("v_add_u32 v4, v4, v5")
    a("s_waitcnt lgkmcnt(0)")
    srd(a, 44, P['x'], SZ['x'])
    srd(a, 48, P['gate'], SZ['gate'])
    srd(a, 60, P['ws'], SZ['ws'])
    GW = 16; XR = 36
    for i in range(5):
        a(f"buffer_load_dwordx4 {vr(GW+4*i)}, v5, s[48:51], 0 offen offset:{256*i}")
    for g4 in range(4):
        a(f"s_mov_b32 s{64+g4}, {5120*g4}")
        for i in range(5):
            a(f"buffer_load_dwordx4 {vr(XR+20*g4+4*i)}, v4, s[44:47], s{64+g4} offen offset:{256*i}")
    for g4 in range(4):
        a(f"s_waitcnt vmcnt({5*(3-g4)})")
        a(f"v_mov_b32 v{8+g4}, 0")
        for r in range(20):
            a(f"v_dot2c_f32_bf16 v{8+g4}, v{XR+20*g4+r}, v{GW+r}")
    for sh in (8, 4, 2, 1):
        for g4 in range(4):
            a(f"v_add_f32_dpp v{8+g4}, v{8+g4}, v{8+g4} row_ror:{sh} row_mask:0xf bank_mask:0xf")
    a("v_cmp_eq_u32 vcc, 1, v2"); a("v_cndmask_b32 v8, v8, v9, vcc")
    a("v_cmp_eq_u32 vcc, 2, v2"); a("v_cndmask_b32 v8, v8, v10, vcc")
    a("v_cmp_eq_u32 vcc, 3, v2"); a("v_cndmask_b32 v8, v8, v11, vcc")
    a("v_cvt_pk_bf16_f32 v8, v8, v8")
    a("v_lshlrev_b32 v8, 16, v8")
    a(f"v_mul_f32 v8, {0x80000000 | LOG2E}, v8")
    a("v_exp_f32 v8, v8")
    a("v_add_f32 v8, 1.0, v8")
    a("v_rcp_f32 v8, v8")
    a("v_cvt_pk_bf16_f32 v8, v8, v8")
    a("v_lshlrev_b32 v8, 16, v8")
    a("v_lshl_add_u32 v3, v2, 2, v3")
    a("v_lshlrev_b32 v3, 2, v3")
    a(f"v_mov_b32 v9, {OOB}")
    a("v_cmp_gt_u32 vcc, 4, v2")
    a("v_cndmask_b32 v3, v9, v3, vcc")
    a(f"s_mov_b32 s8, {GG}")
    a("buffer_store_dword v8, v3, s[60:63], s8 offen")
    a.label("LA_end")
    return kern("ka_kernel", a.text(), vgpr=256)

CH_LDS = 8736
def conv_wave(a, sCh, sLds, srdH, srdWS, srdD):
    a("v_lshlrev_b32 v2, 4, v1")
    a(f"s_lshl_b32 s70, s{sCh}, 12")
    a(f"s_add_u32 m0, s{sLds}, 32")
    for i in range(4):
        a(f"buffer_load_dwordx4 v2, {sr(srdH)}, s70 offen offset:{1024*i} nt lds")
    a("v_sub_u32 v3, 63, v1")
    a("v_lshlrev_b32 v3, 6, v3")
    for rho in range(4):
        a(f"s_add_u32 m0, s{sLds}, {4128 + rho*1152}")
        a(f"s_add_u32 s71, s70, {UT + 16*rho}")
        a(f"buffer_load_dwordx4 v3, {sr(srdWS)}, s71 offen lds")
    a(f"s_lshl_b32 s71, s{sCh}, 1")
    a("v_mov_b32 v4, 0")
    a(f"buffer_load_short_d16_hi v4, off, {sr(srdD)}, s71")
    a("v_mov_b32 v6, 0"); a("v_mov_b32 v7, 0")
    a("v_lshrrev_b32 v8, 4, v1")
    a("v_and_b32 v9, 15, v1")
    a("v_mul_u32_u24 v10, 1152, v8")
    a("v_lshl_add_u32 v10, v9, 3, v10")
    a(f"v_add_u32 v10, s{sLds}, v10")
    a(f"ds_write_b64 v10, v[6:7] offset:{4128+1024}")
    a("v_and_b32 v10, 3, v1")
    a("v_lshlrev_b32 v10, 3, v10")
    a(f"v_add_u32 v10, s{sLds}, v10")
    a("ds_write_b64 v10, v[6:7]")
    a("v_bfe_u32 v10, v1, 2, 2")
    a("v_and_b32 v11, 3, v1")
    a("v_add_u32 v10, v10, v11")
    a("v_lshlrev_b32 v10, 3, v10")
    a("v_lshl_add_u32 v10, v8, 6, v10")
    a(f"v_add_u32 v10, s{sLds}, v10")
    a("v_lshlrev_b32 v11, 3, v9")
    a("v_lshlrev_b32 v12, 4, v8")
    a("v_sub_u32 v11, v12, v11")
    a(f"v_add_u32 v11, {4128+120}, v11")
    a(f"v_add_u32 v11, s{sLds}, v11")
    a("v_lshl_add_u32 v12, v9, 2, v8")
    a("v_sub_u32 v13, 63, v12")
    a("v_lshlrev_b32 v13, 1, v13")
    a(f"v_add_u32 v13, s{sLds}, v13")
    a("v_subrev_u32 v14, 16, v1")
    a("v_add_u32 v15, 47, v1")
    a("v_cmp_gt_u32 vcc, 16, v1")
    a("v_cndmask_b32 v14, v14, v15, vcc")
    a("v_cmp_eq_u32 s[72:73], 0, v1")
    a("v_cndmask_b32 v14, v14, 63, s[72:73]")
    a("v_lshlrev_b32 v14, 2, v14")
    a("v_lshlrev_b32 v12, 3, v12")
    a(f"s_add_u32 s70, s70, {YT}")
    AFR = 16; S = 80; BFR = 208; TMP = 240
    acc = lambda T, rho: S + (T * 4 + rho) * 4
    for r in range(TMP + 4, TMP + 14): a(f"v_mov_b32 v{r}, 0")
    a("s_waitcnt vmcnt(0) lgkmcnt(0)")
    lg = Lg(a, "lgkmcnt", 15)
    def a_reads(sig):
        return [f"ds_read_b64_tr_b16 {vr(AFR+4*sig+2*hh,2)}, v10 offset:{8+256*sig+32*hh}" for hh in range(2)]
    def b_reads(beta, rho):
        buf = BFR + ((beta + 1) & 1) * 16 + rho * 4
        return [f"ds_read_b64 {vr(buf+2*hh,2)}, v11 offset:{64*(14-beta)+1152*rho+8*hh}" for hh in range(2)]
    tA = {}; tB = {}
    def rdA(sig):
        for t in a_reads(sig): tA[sig] = lg.issue(t)
    def rdB(beta, rho):
        for t in b_reads(beta, rho): tB[beta, rho] = lg.issue(t)
    started = set()
    UR = TMP + 4
    def epilogue(T):
        s0, s1, s2, s3 = (acc(T, r) for r in range(4))
        pc = TMP + 8 + 3 * (T & 1); pp = TMP + 8 + 3 * ((T + 1) & 1)
        st = []
        tk = {}
        st.append(lambda: a(f"v_add_f32 v{s1+3}, v{s1+3}, v{s2+2}"))
        st.append(lambda: a(f"v_add_f32 v{s2+3}, v{s2+3}, v{s3+2}"))
        st.append(lambda: a(f"v_add_f32 v{s1+3}, v{s1+3}, v{s3+1}"))
        def bp(k, src):
            def f(): tk[k] = lg.issue(f"ds_bpermute_b32 v{pc+k}, v14, v{src}")
            return f
        st.append(bp(2, s3+3)); st.append(bp(1, s2+3)); st.append(bp(0, s1+3))
        def ur(i):
            def f(): tk['u'] = lg.issue(f"ds_read_u16_d16_hi v{UR+i}, v13 offset:{4128+128*(7-T)+1152*i}")
            return f
        for i in range(4): st.append(ur(i))
        st.append(lambda: a(f"v_add_f32 v{s0+1}, v{s0+1}, v{s1+0}"))
        st.append(lambda: a(f"v_add_f32 v{s0+2}, v{s0+2}, v{s1+1}"))
        st.append(lambda: a(f"v_add_f32 v{s0+3}, v{s0+3}, v{s1+2}"))
        st.append(lambda: a(f"v_add_f32 v{s0+2}, v{s0+2}, v{s2+0}"))
        st.append(lambda: a(f"v_add_f32 v{s0+3}, v{s0+3}, v{s2+1}"))
        st.append(lambda: a(f"v_add_f32 v{s0+3}, v{s0+3}, v{s3+0}"))
        def sel(k):
            def f():
                lg.wait(tk['u'])
                a(f"v_cndmask_b32 v{TMP+k}, v{pc+k}, v{pp+k}, s[72:73]")
            return f
        for k in range(3): st.append(sel(k))
        for i in range(4): st.append((lambda i: lambda: a(f"v_fmac_f32 v{s0+i}, v{UR+i}, v4"))(i))
        for k in range(3): st.append((lambda k: lambda: a(f"v_add_f32 v{s0+k}, v{s0+k}, v{TMP+k}"))(k))
        st.append(lambda: a(f"v_cvt_pk_bf16_f32 v{s1}, v{s0}, v{s0+1}"))
        st.append(lambda: a(f"v_cvt_pk_bf16_f32 v{s1+1}, v{s0+2}, v{s0+3}"))
        st.append(lambda: a(f"buffer_store_dwordx2 {vr(s1,2)}, v12, {sr(srdWS)}, s70 offen offset:{512*T}"))
        return st
    rdB(-1, 0); rdA(1); rdA(3); rdA(5); rdB(-1, 1)
    side = []
    for sig in (7, 9, 11, 13, 15): side.append((lambda s: lambda: rdA(s))(sig))
    for rho in (2, 3): side.append((lambda r: lambda: rdB(-1, r))(rho))
    for sig in range(0, 16, 2): side.append((lambda s: lambda: rdA(s))(sig))
    for beta in range(-1, 15):
        ts = [t for t in range(8) if 0 <= 2*t - beta <= 15]
        nxt = []
        if beta < 14:
            nxt = [(lambda b, r: lambda: rdB(b, r))(beta + 1, r) for r in range(4)]
        nm = 4 * len(ts)
        k = 0
        for rho in range(4):
            for t in ts:
                sig = 2*t - beta
                while sig not in tA or (beta, rho) not in tB:
                    side.pop(0)()
                lg.wait(max(tA[sig], tB[beta, rho]))
                c = vr(acc(t, rho)); buf = BFR + ((beta + 1) & 1) * 16 + rho * 4
                first = (t, rho) not in started; started.add((t, rho))
                a(f"v_mfma_f32_16x16x32_bf16 {c}, {vr(AFR+4*sig)}, {vr(buf)}, {0 if first else c}")
                k += 1
                if t == ts[0] and nxt:
                    nxt.pop(0)()
                else:
                    for _ in range(2):
                        if side: side.pop(0)()
        if beta >= 0 and beta % 2 == 0:
            side.extend(epilogue(beta // 2))
    while side: side.pop(0)()

def kernel_b():
    a = A()
    a("s_cmp_ge_u32 s2, 192")
    a("s_cbranch_scc1 LB_end")
    load_ptrs(a)
    a("v_and_b32 v1, 63, v0")
    a("v_lshrrev_b32 v2, 6, v0")
    a("v_readfirstlane_b32 s3, v2")
    a("s_cmp_ge_u32 s2, 160")
    a("s_cbranch_scc1 LB_red")
    a("s_lshl_b32 s4, s2, 2")
    a("s_add_u32 s4, s4, s3")
    a(f"s_mul_i32 s5, s3, {CH_LDS}")
    a("s_waitcnt lgkmcnt(0)")
    srd(a, 44, P['ssmk'], SZ['ssmk'])
    srd(a, 48, P['ssmd'], SZ['ssmd'])
    srd(a, 60, P['ws'], SZ['ws'])
    conv_wave(a, 4, 5, 44, 60, 48)
    a("s_endpgm")
    a.label("LB_red")
    a("s_sub_u32 s4, s2, 160")
    a("s_mul_i32 s5, s4, 20")
    a("s_and_b32 s6, s5, 15")
    a("v_lshrrev_b32 v2, 3, v0")
    a("v_bfe_u32 v3, v0, 1, 2")
    a("v_and_b32 v4, 1, v0")
    a("v_lshlrev_b32 v5, 2, v3")
    a("v_lshl_add_u32 v5, v4, 4, v5")
    a("v_subrev_u32 v5, s6, v5")
    a("v_and_b32 v6, 3, v2")
    a("v_lshrrev_b32 v7, 2, v2")
    a("v_lshl_add_u32 v6, v6, 2, v7")
    a("v_cmp_gt_u32 vcc, 16, v2")
    a("v_cndmask_b32 v6, v2, v6, vcc")
    a("v_mul_u32_u24 v6, 80, v6")
    a("v_lshl_add_u32 v6, v5, 2, v6")
    a("v_cmp_gt_u32 vcc, 20, v5")
    a("v_cmp_gt_u32 s[8:9], 21, v2")
    a("s_and_b64 vcc, vcc, s[8:9]")
    a(f"v_mov_b32 v7, {OOB}")
    a("v_cndmask_b32 v6, v7, v6, vcc")
    a("v_lshlrev_b32 v8, 3, v0")
    a("v_cndmask_b32 v8, v7, v8, s[8:9]")
    a("s_mul_i32 s7, s4, 1680")
    a(f"s_add_u32 s7, s7, {KVP}")
    a("s_waitcnt lgkmcnt(0)")
    srd(a, 60, P['ws'], SZ['ws'])
    for rb in range(16):
        a(f"buffer_load_dwordx4 {vr(16+4*rb)}, v6, s[60:63], s7 offen")
        a("s_add_u32 s7, s7, 53760")
    for rb in range(1, 16):
        a(f"s_waitcnt vmcnt({15-rb})")
        for i in range(4): a(f"v_add_f32 v{16+i}, v{16+i}, v{16+4*rb+i}")
    a("v_cvt_pk_bf16_f32 v10, v16, v17")
    a("v_cvt_pk_bf16_f32 v11, v18, v19")
    a("s_mul_i32 s7, s4, 1344")
    a(f"s_add_u32 s7, s7, {KVF}")
    a("buffer_store_dwordx2 v[10:11], v8, s[60:63], s7 offen")
    a.label("LB_end")
    return kern("kb_kernel", a.text(), vgpr=256)

L_WO = 0; L_KV = 102400; L_Y = 102400 + 43008
def kernel_c():
    a = A()
    a("s_cmp_ge_u32 s2, 256")
    a("s_cbranch_scc1 LC_end")
    load_ptrs(a)
    a("v_and_b32 v1, 63, v0")
    a("v_lshrrev_b32 v2, 6, v0")
    a("v_readfirstlane_b32 s3, v2")
    a("s_and_b32 s4, s2, 7")
    a("s_lshr_b32 s5, s2, 3")
    a("s_lshr_b32 s6, s4, 1")
    a("s_lshl_b32 s6, s6, 3")
    a("s_and_b32 s7, s5, 7")
    a("s_add_u32 s6, s6, s7")
    a("s_and_b32 s7, s4, 1")
    a("s_lshl_b32 s7, s7, 2")
    a("s_lshr_b32 s8, s5, 3")
    a("s_add_u32 s7, s7, s8")
    a("s_and_b32 s8, s3, 3")
    a("s_lshr_b32 s9, s3, 2")
    a("v_lshlrev_b32 v2, 4, v1")
    a("v_lshlrev_b32 v3, 3, v1")
    a("s_mul_i32 s10, s7, 160")
    for i in range(5):
        d = 4 + i
        a(f"v_add_u32 v9, {64*i}, v1")
        a("v_mul_u32_u24 v10, 6554, v9")
        a("v_lshrrev_b32 v10, 16, v10")
        a("v_mul_u32_u24 v11, 10, v10")
        a("v_sub_u32 v9, v9, v11")
        a("v_and_b32 v11, 17, v10")
        a("v_bfe_u32 v12, v10, 1, 2")
        a("v_lshl_add_u32 v11, v12, 2, v11")
        a("v_bfe_u32 v12, v10, 3, 1")
        a("v_lshl_add_u32 v11, v12, 1, v11")
        a("v_mul_u32_u24 v11, 1280, v11")
        a("v_lshl_add_u32 v11, v9, 4, v11")
        a(f"v_add_u32 v{d}, s10, v11")
    a("s_waitcnt lgkmcnt(0)")
    srd(a, 44, P['wo'], SZ['wo'])
    srd(a, 60, P['ws'], SZ['ws'])
    srd(a, 48, P['x'], SZ['x'])
    srd(a, 52, P['out'], SZ['out'])
    PQ = 24
    a("s_lshl_b32 s11, s6, 2")
    a("s_add_u32 s11, s11, s8")
    a("s_mul_i32 s12, s11, 40")
    a("s_mul_i32 s13, s9, 20")
    a("s_add_u32 s12, s12, s13")
    a("s_lshl_b32 s12, s12, 9")
    a(f"s_add_u32 s12, s12, {PQF}")
    a("s_lshl_b32 s13, s3, 10")
    a(f"s_add_u32 s14, s13, {KVF}")
    a(f"s_add_u32 s13, s13, {L_KV}")
    for i in range(6):
        if i == 5:
            a("s_cmp_ge_u32 s3, 2")
            a("s_cbranch_scc1 LC_kvdone")
        a(f"s_add_u32 m0, s13, {8192*i}")
        a(f"buffer_load_dwordx4 v2, s[60:63], s14 offen lds")
        a("s_add_u32 s14, s14, 8192")
    a.label("LC_kvdone")
    for T in range(20):
        if T % 8 == 0 and T: a("s_add_u32 s12, s12, 4096")
        a(f"buffer_load_dwordx2 {vr(PQ+2*T,2)}, v3, s[60:63], s12 offen offset:{512*(T%8)}")
    a("s_mul_i32 s13, s3, 5120")
    a("s_mul_i32 s14, s3, 40960")
    for b in range(3):
        if b == 2:
            a("s_cmp_ge_u32 s3, 4")
            a("s_cbranch_scc1 LC_wodone")
        for i in range(5):
            a(f"s_add_u32 m0, s13, {L_WO + 40960*b + 1024*i}")
            a(f"buffer_load_dwordx4 v{4+i}, s[44:47], s14 offen lds")
        a(f"s_add_u32 s14, s14, {8*40960}")
    a.label("LC_wodone")
    a("v_lshrrev_b32 v9, 3, v1")
    a("v_and_b32 v10, 7, v1")
    a("v_lshlrev_b32 v9, 12, v9")
    a("v_lshl_add_u32 v9, v10, 4, v9")
    a("s_mul_i32 s13, s7, 80")
    a("s_lshl_b32 s14, s3, 3")
    a("s_add_u32 s13, s13, s14")
    a("s_lshl_b32 s13, s13, 12")
    a("s_lshl_b32 s14, s6, 7")
    a("s_add_u32 s13, s13, s14")
    a(f"s_add_u32 s13, s13, {YT}")
    a("s_lshl_b32 s14, s3, 10")
    a(f"s_add_u32 m0, s14, {L_Y}")
    a("buffer_load_dwordx4 v9, s[60:63], s13 offen lds")
    a("s_cmp_ge_u32 s3, 2")
    a("s_cbranch_scc1 LC_ydone")
    a(f"s_add_u32 m0, s14, {L_Y + 8192}")
    a(f"s_add_u32 s13, s13, {64*4096}")
    a("buffer_load_dwordx4 v9, s[60:63], s13 offen lds")
    a.label("LC_ydone")
    a("v_and_b32 v9, 15, v1")
    a("v_lshrrev_b32 v10, 4, v1")
    a("s_lshl_b32 s13, s11, 4")
    a("v_add_u32 v11, s13, v9")
    a("v_lshlrev_b32 v12, 2, v11")
    a("v_mul_u32_u24 v11, 1280, v11")
    a("v_lshl_add_u32 v11, v10, 3, v11")
    a("v_add_u32 v11, s10, v11")
    XR = 64
    for T in range(5):
        a(f"buffer_load_dwordx2 {vr(XR+2*T,2)}, v11, s[48:51], 0 offen offset:{32*T}")
    a(f"s_mov_b32 s13, {GG}")
    a("buffer_load_dword v74, v12, s[60:63], s13 offen")
    a("s_mul_i32 s13, s9, 21504")
    a(f"s_add_u32 s13, s13, {L_KV}")
    a("v_lshlrev_b32 v13, 4, v10")
    a("v_add_u32 v13, s13, v13")
    a("v_lshl_add_u32 v14, v9, 6, v13")
    a("v_lshrrev_b32 v15, 2, v9")
    a("v_add_u32 v15, 16, v15")
    a("v_and_b32 v16, 3, v9")
    a("v_cmp_eq_u32 vcc, 0, v16")
    a("v_cndmask_b32 v15, 20, v15, vcc")
    a("v_lshl_add_u32 v15, v15, 6, v13")
    a("v_lshrrev_b32 v16, 1, v10")
    a("v_lshlrev_b32 v16, 3, v16")
    a("v_bfe_u32 v17, v1, 2, 2")
    a("v_lshl_add_u32 v16, v17, 1, v16")
    a("v_and_b32 v17, 1, v10")
    a("v_add_u32 v16, v16, v17")
    a("v_mul_u32_u24 v16, 160, v16")
    a("v_and_b32 v17, 3, v1")
    a("v_lshl_add_u32 v16, v17, 3, v16")
    a("s_mul_i32 s13, s9, 51200")
    a("v_add_u32 v16, s13, v16")
    a("v_lshrrev_b32 v18, 2, v1")
    a("v_lshlrev_b32 v18, 7, v18")
    a("v_lshl_add_u32 v18, v17, 3, v18")
    a("s_lshl_b32 s13, s8, 5")
    a(f"s_add_u32 s13, s13, {L_Y}")
    a("v_add_u32 v18, s13, v18")
    a("s_mul_i32 s13, s8, 5120")
    a(f"s_add_u32 s13, s13, {L_KV}")
    a("v_add_u32 v19, s13, v2")
    a(f"s_mov_b32 s15, {EPS}")
    a("s_waitcnt vmcnt(0)")
    a("s_barrier")
    ACC = 76
    KA_ = 96
    NUM = 112
    OV = 128
    OF = 144
    WF = 184
    lg = Lg(a, "lgkmcnt", 15)
    tKV = {}; tW = {}
    def rdkv(h):
        b = KA_ + (h & 1) * 8
        lg.issue(f"ds_read_b128 {vr(b)}, v14 offset:{1344*h}")
        tKV[h] = lg.issue(f"ds_read_b128 {vr(b+4)}, v15 offset:{1344*h}")
    def rdw(kap, T):
        b = WF + (kap & 1) * 20 + 4 * T
        for hh in range(2):
            tW[kap, T] = lg.issue(f"ds_read_b64_tr_b16 {vr(b+2*hh,2)}, v16 offset:{L_WO + kap*5120 + hh*2560 + 32*T}")
    def omfma(h):
        lg.wait(tKV[h])
        b = KA_ + (h & 1) * 8; n = NUM + (h & 1) * 8
        ta = (20 * h) // 16
        for t in range(2):
            a(f"v_mfma_f32_16x16x32_bf16 {vr(n+4*t)}, {vr(b+4*t)}, {vr(PQ+2*ta)}, 0")
    def ofin(h):
        n = NUM + (h & 1) * 8
        a(f"v_add_f32 v{n+5}, s15, v{n+5}")
        a(f"v_rcp_f32 v{n+5}, v{n+5}")
        for i in range(5):
            a(f"v_mul_f32 v{OV + (5*h+i) % 16}, v{n+i}, v{n+5}")
        lo = (5 * h) // 2; hi = (5 * h + 5) // 2
        for p in range(lo, hi):
            a(f"v_cvt_pk_bf16_f32 v{OF+p}, v{OV + (2*p) % 16}, v{OV + (2*p+1) % 16}")
    def gemm(kap):
        for T in range(5):
            lg.wait(tW[kap, T])
            c = vr(ACC + 4*T)
            a(f"v_mfma_f32_16x16x32_bf16 {c}, {vr(WF + (kap&1)*20 + 4*T)}, {vr(OF+4*kap)}, {c if kap else 0}")
    rdkv(0); rdkv(1)
    for T in range(5): rdw(0, T)
    omfma(0)
    kap = 0
    for h in range(16):
        if h + 1 < 16: omfma(h + 1)
        if h + 2 < 16: rdkv(h + 2)
        ofin(h)
        while kap < 10 and 8 * (kap + 1) <= 5 * (h + 1):
            if kap + 1 < 10:
                for T in range(5): rdw(kap + 1, T)
            gemm(kap); kap += 1
    a("s_barrier")
    a("s_cmp_eq_u32 s9, 0")
    a("s_cbranch_scc1 LC_fin")
    for T in range(5):
        a(f"ds_write_b128 v19, {vr(ACC+4*T)} offset:{1024*T}")
    a("s_waitcnt lgkmcnt(0)")
    a("s_barrier")
    a("s_endpgm")
    a.label("LC_fin")
    YR = 96
    for T in range(5):
        a(f"ds_read_b64_tr_b16 {vr(YR+2*T,2)}, v18 offset:{2048*T}")
    a("s_barrier")
    for T in range(5):
        a(f"ds_read_b128 {vr(WF+4*T)}, v19 offset:{1024*T}")
    a("v_sub_f32 v75, 1.0, v74")
    a("s_mov_b32 s13, 0xffff0000")
    for T in range(5):
        a(f"s_waitcnt lgkmcnt({4-T})")
        for i in range(4):
            xs = XR + 2*T + (i >> 1); ys = YR + 2*T + (i >> 1)
            if i & 1:
                a(f"v_and_b32 v{112+i}, s13, v{xs}"); a(f"v_and_b32 v{116+i}, s13, v{ys}")
            else:
                a(f"v_lshlrev_b32 v{112+i}, 16, v{xs}"); a(f"v_lshlrev_b32 v{116+i}, 16, v{ys}")
        for i in range(4):
            a(f"v_add_f32 v{ACC+4*T+i}, v{ACC+4*T+i}, v{WF+4*T+i}")
            a(f"v_mul_f32 v{112+i}, v{112+i}, v{116+i}")
        for i in range(4):
            a(f"v_mul_f32 v{112+i}, v{112+i}, v75")
        for i in range(4):
            a(f"v_fmac_f32 v{112+i}, v{ACC+4*T+i}, v74")
        a(f"v_cvt_pk_bf16_f32 v{120+2*T}, v112, v113")
        a(f"v_cvt_pk_bf16_f32 v{121+2*T}, v114, v115")
        a(f"buffer_store_dwordx2 {vr(120+2*T,2)}, v11, s[52:55], 0 offen offset:{32*T}")
    a.label("LC_end")
    return kern("kc_kernel", a.text(), vgpr=256)

def build(which="abc"):
    L = dict(a=f"; @launch kernel=ka_kernel grid=(256,1,1) block=(512,1,1) lds={4*SLOT}\n",
             b=f"; @launch kernel=kb_kernel grid=(192,1,1) block=(256,1,1) lds={4*CH_LDS}\n",
             c=f"; @launch kernel=kc_kernel grid=(256,1,1) block=(512,1,1) lds={L_Y+10240}\n")
    K = dict(a=kernel_a, b=kernel_b, c=kernel_c)
    return "".join(L[k] for k in which) + HDR + "".join(K[k]() for k in which)

if __name__ == "__main__":
    out = sys.argv[1] if len(sys.argv) > 1 else "m1.s"
    which = sys.argv[2] if len(sys.argv) > 2 else "abc"
    open(out, "w").write(build(which))
```
